```python
import torch

def _softmax(x, axis=-1):
    return torch.softmax(x, dim=axis)
def _gelu(x):
    return torch.nn.functional.gelu(x, approximate="tanh")
def _silu(x):
    return torch.nn.functional.silu(x)
def _sigmoid(x):
    return torch.sigmoid(x)
def _layernorm(x, axis=-1, eps=1e-5):
    m = x.mean(dim=axis, keepdim=True)
    v = x.var(dim=axis, keepdim=True, unbiased=False)
    return (x - m) / torch.sqrt(v + eps)
def _scatter_add(tgt, idx, src, axis=0):
    return tgt.clone().index_add_(axis, idx, src)
def _segment_sum(src, seg, n):
    out = torch.zeros((n,) + src.shape[1:], dtype=src.dtype)
    return out.index_add_(0, seg, src)
def _pad(x, pw):
    flat = tuple(v for pair in reversed(pw) for v in pair)
    return torch.nn.functional.pad(x, flat)

kernel_name = 'sequential_preLN__sliding_local_dilated__swiglu_ffn__prompt'

def setup_inputs():

    _w = (lambda a: (lambda t: t.to(torch.bfloat16) if t.is_floating_point() else t)(torch.as_tensor(a)))
    def _A_setup():
        B, S, D = 1, 2048, 448
        return {
            "x": _w((lambda *s: torch.randn(*s, dtype=torch.bfloat16) * 0.05)(B, S, D)),
            "wqkv": _w((lambda *s: torch.randn(*s, dtype=torch.bfloat16) * 0.05)(D, 3 * D)),
            "wo": _w((lambda *s: torch.randn(*s, dtype=torch.bfloat16) * 0.05)(D, D)),
        }
    _A_in = _A_setup()

    def _B_setup():
        B, S, D, F = 1, 2048, 448, 1792
        return {
            "x": _w((lambda *s: torch.randn(*s, dtype=torch.bfloat16) * 0.05)(B, S, D)),
            "w_gate": _w((lambda *s: torch.randn(*s, dtype=torch.bfloat16) * 0.05)(D, F)),
            "w_up": _w((lambda *s: torch.randn(*s, dtype=torch.bfloat16) * 0.05)(D, F)),
            "w_down": _w((lambda *s: torch.randn(*s, dtype=torch.bfloat16) * 0.05)(F, D)),
        }
    _B_in = _B_setup()

    return {
        "A_x": _A_in["x"],
        "A_wqkv": _A_in["wqkv"],
        "A_wo": _A_in["wo"],
        "B_x": _B_in["x"],
        "B_w_gate": _B_in["w_gate"],
        "B_w_up": _B_in["w_up"],
        "B_w_down": _B_in["w_down"],
    }

def reference(A_x, A_wqkv, A_wo, B_x, B_w_gate, B_w_up, B_w_down):
    def _A_ref(x, wqkv, wo):
        B, S, D = x.shape
        H = 16; Dh = D // H
        W, dil = 8, 2
        qkv = (lambda x, *d: x.permute(*d))((x @ wqkv).reshape(B, S, 3, H, Dh), 2, 0, 3, 1, 4)
        q, k, v = qkv[0], qkv[1], qkv[2]
        scale = Dh ** -0.5
        pos = torch.arange(S)
        off = torch.arange(W) * dil
        idx = pos[:, None] - off[None, :]
        mask = idx >= 0
        idx_c = torch.where(mask, idx, 0).reshape(-1)
        kg = k[:, :, idx_c, :].reshape(B, H, S, W, Dh)
        vg = v[:, :, idx_c, :].reshape(B, H, S, W, Dh)
        logits = torch.einsum("bhsd,bhswd->bhsw", q, kg) * scale
        logits = torch.where(mask[None, None, :, :], logits, -1e9)
        attn = _softmax(logits, axis=-1)
        o = torch.einsum("bhsw,bhswd->bhsd", attn, vg)
        return (lambda x, *d: x.permute(*d))(o, 0, 2, 1, 3).reshape(B, S, D) @ wo

    def _B_ref(x, w_gate, w_up, w_down):
        g = _silu(x @ w_gate)
        u = x @ w_up
        return (g * u) @ w_down

    x = A_x
    h = x + _A_ref(_layernorm(x, axis=-1), A_wqkv, A_wo)
    h2 = h + _B_ref(_layernorm(h, axis=-1), B_w_gate, B_w_up, B_w_down)
    return h2
```

```python
import sys
NAME = "sequential_preLN__sliding_local_dilated__swiglu_ffn__prompt"
WS_QKV = 0
WS_H = 0x600000
WS_ACT = 0x800000
S = 2048; D = 448; F = 1792

class K:
    def __init__(s, name):
        s.name = name; s.L = []; s.vm = []; s.lg = []; s.lab = 0
    def e(s, x): s.L.append("    " + x)
    def c(s, x): s.L.append("    ; " + x)
    def label(s, x): s.L.append(x + ":")
    def vmem(s, x, tag=None): s.e(x); s.vm.append(tag)
    def ds(s, x, tag=None): s.e(x); s.lg.append(tag)
    def wvm(s, tag=None):
        if tag is None:
            s.e("s_waitcnt vmcnt(0)"); s.vm = []; return
        if tag not in s.vm: return
        i = len(s.vm) - 1 - s.vm[::-1].index(tag)
        n = len(s.vm) - 1 - i
        s.e("s_waitcnt vmcnt(%d)" % min(n, 63)); s.vm = s.vm[i+1:]
    def wlg(s, tag=None):
        if tag is None:
            s.e("s_waitcnt lgkmcnt(0)"); s.lg = []; return
        if tag not in s.lg: return
        i = len(s.lg) - 1 - s.lg[::-1].index(tag)
        n = len(s.lg) - 1 - i
        s.e("s_waitcnt lgkmcnt(%d)" % min(n, 15)); s.lg = s.lg[i+1:]
    def srd(s, d, ptr, nbytes, off=0):
        if off:
            s.e("s_add_u32 s%d, s%d, 0x%x" % (d, ptr, off)); s.e("s_addc_u32 s%d, s%d, 0" % (d+1, ptr+1))
        else:
            s.e("s_mov_b32 s%d, s%d" % (d, ptr)); s.e("s_mov_b32 s%d, s%d" % (d+1, ptr+1))
        s.e("s_mov_b32 s%d, 0x%x" % (d+2, nbytes)); s.e("s_mov_b32 s%d, 0x00020000" % (d+3))
    def text(s, nv, acc, nsg=64):
        out = [".globl %s" % s.name, ".p2align 8", ".type %s,@function" % s.name, "%s:" % s.name] + s.L + ["    s_endpgm"]
        kd = [".amdhsa_kernel %s" % s.name, "  .amdhsa_next_free_vgpr %d" % nv, "  .amdhsa_next_free_sgpr %d" % nsg,
              "  .amdhsa_accum_offset %d" % acc, "  .amdhsa_group_segment_fixed_size 0", "  .amdhsa_kernarg_size 80",
              "  .amdhsa_user_sgpr_count 2", "  .amdhsa_user_sgpr_kernarg_segment_ptr 1", "  .amdhsa_system_sgpr_workgroup_id_x 1", ".end_amdhsa_kernel"]
        return "\n".join(out), "\n".join(kd)

def vr(b, n): return "v[%d:%d]" % (b, b+n-1)
def ar(b, n): return "a[%d:%d]" % (b, b+n-1)

def prologue(k, nwg, args):
    for slot, sr in args:
        k.e("s_load_dwordx2 s[%d:%d], s[0:1], %d" % (sr, sr+1, slot*8))
    k.e("s_cmp_ge_u32 s2, %d" % nwg)
    k.e("s_cbranch_scc1 %s_end" % k.name)
    k.e("v_lshrrev_b32 v2, 6, v0")
    k.e("v_and_b32 v1, 63, v0")
    k.e("s_nop 0")
    k.e("v_readfirstlane_b32 s3, v2")
    k.e("s_waitcnt lgkmcnt(0)")

def ln_in_regs(k, A0, nd, t0, kdim):
    s0, s1, q0, q1, m, r, t1, t2 = range(t0, t0+8)
    k.e("s_mov_b32 s40, 0x3f803f80")
    for x in (s0, s1, q0, q1): k.e("v_mov_b32 v%d, 0" % x)
    for i in range(nd):
        k.e("v_dot2_f32_bf16 v%d, v%d, s40, v%d" % ((s0, s1)[i&1], A0+i, (s0, s1)[i&1]))
        k.e("v_dot2_f32_bf16 v%d, v%d, v%d, v%d" % ((q0, q1)[i&1], A0+i, A0+i, (q0, q1)[i&1]))
    k.e("s_nop 3")
    k.e("v_add_f32 v%d, v%d, v%d" % (s0, s0, s1))
    k.e("v_add_f32 v%d, v%d, v%d" % (q0, q0, q1))
    k.e("v_mov_b32 v%d, v%d" % (s1, s0)); k.e("v_mov_b32 v%d, v%d" % (q1, q0))
    k.e("s_nop 1")
    k.e("v_permlane32_swap_b32 v%d, v%d" % (s0, s1))
    k.e("v_permlane32_swap_b32 v%d, v%d" % (q0, q1))
    k.e("s_nop 1")
    k.e("v_add_f32 v%d, v%d, v%d" % (s0, s0, s1))
    k.e("v_add_f32 v%d, v%d, v%d" % (q0, q0, q1))
    k.e("v_mul_f32 v%d, 0x%08x, v%d" % (m, f2u(1.0/kdim), s0))
    k.e("v_mul_f32 v%d, 0x%08x, v%d" % (q0, f2u(1.0/kdim), q0))
    k.e("v_fma_f32 v%d, -v%d, v%d, v%d" % (q0, m, m, q0))
    k.e("v_add_f32 v%d, 0x%08x, v%d" % (q0, f2u(1e-5), q0))
    k.e("v_rsq_f32 v%d, v%d" % (r, q0))
    k.e("s_nop 0")
    k.e("v_mul_f32 v%d, v%d, v%d" % (m, m, r))
    k.e("v_sub_f32 v%d, 0, v%d" % (m, m))
    for i in range(nd):
        k.e("v_lshlrev_b32 v%d, 16, v%d" % (t1, A0+i))
        k.e("v_and_b32 v%d, 0xffff0000, v%d" % (t2, A0+i))
        k.e("v_fma_f32 v%d, v%d, v%d, v%d" % (t1, t1, r, m))
        k.e("v_fma_f32 v%d, v%d, v%d, v%d" % (t2, t2, r, m))
        k.e("v_cvt_pk_bf16_f32 v%d, v%d, v%d" % (A0+i, t1, t2))
    k.e("s_nop 1")

import struct
def f2u(f): return struct.unpack("<I", struct.pack("<f", f))[0]

def tr_base32(k, dst, rowb, tmp):
    k.e("v_lshrrev_b32 v%d, 5, v1" % dst)
    k.e("v_bfe_u32 v%d, v1, 2, 2" % tmp)
    k.e("v_lshl_add_u32 v%d, v%d, 3, v%d" % (dst, dst, tmp))
    k.e("v_mul_u32_u24 v%d, %d, v%d" % (dst, rowb, dst))
    k.e("v_bfe_u32 v%d, v1, 4, 1" % tmp)
    k.e("v_lshl_add_u32 v%d, v%d, 5, v%d" % (dst, tmp, dst))
    k.e("v_and_b32 v%d, 3, v1" % tmp)
    k.e("v_lshl_add_u32 v%d, v%d, 3, v%d" % (dst, tmp, dst))

def k1():
    k = K("k1_kernel")
    NB = 14
    prologue(k, 224, [(0, 4), (1, 6), (9, 20)])
    k.srd(8, 4, S*D*2); k.srd(12, 6, D*1344*2); k.srd(16, 20, S*1344*2, WS_QKV)
    k.e("s_and_b32 s24, s2, 7"); k.e("s_lshr_b32 s25, s2, 3")
    k.e("s_cmp_ge_u32 s25, 14"); k.e("s_cselect_b32 s26, 1, 0")
    k.e("s_mul_i32 s27, s26, 14"); k.e("s_sub_u32 s27, s25, s27")
    k.e("s_lshl_b32 s24, s24, 1"); k.e("s_add_u32 s24, s24, s26")
    k.e("s_lshl_b32 s28, s24, 7"); k.e("s_lshl_b32 s29, s3, 5"); k.e("s_add_u32 s28, s28, s29")
    k.e("v_mul_u32_u24 v2, 0x5556, v1"); k.e("v_lshrrev_b32 v2, 18, v2")
    k.e("v_mul_u32_u24 v3, 12, v2"); k.e("v_sub_u32 v3, v1, v3")
    k.e("v_mul_u32_u24 v2, 2688, v2"); k.e("v_lshl_add_u32 v2, v3, 4, v2")
    k.e("s_mul_i32 s30, s27, 192")
    k.e("s_mul_i32 s31, s3, %d" % (28*4*2688)); k.e("s_add_u32 s30, s30, s31")
    k.e("s_mul_i32 s31, s3, %d" % (28*768))
    k.e("s_mov_b32 exec_hi, 0xffff")
    for i in range(28):
        k.e("s_mov_b32 m0, s31"); k.e("s_nop 0")
        k.vmem("buffer_load_dwordx4 v2, s[12:15], s30 offen lds", "B")
        k.e("s_add_u32 s30, s30, %d" % (4*2688)); k.e("s_add_u32 s31, s31, 768")
    k.e("s_mov_b64 exec, -1")
    A0 = 16
    k.e("v_and_b32 v3, 31, v1"); k.e("v_add_u32 v3, s28, v3"); k.e("v_mul_u32_u24 v3, 896, v3")
    k.e("v_lshrrev_b32 v4, 5, v1"); k.e("v_lshl_add_u32 v3, v4, 4, v3")
    for t in range(28):
        k.vmem("buffer_load_dwordx4 %s, v3, s[8:11], 0 offen offset:%d" % (vr(A0+4*t, 4), t*32), "A")
    k.wvm("A")
    ln_in_regs(k, A0, 112, 4, 448)
    tr_base32(k, 5, 192, 6)
    k.e("v_add_u32 v6, %d, v5" % (14*3072))
    for i in range(48): k.e("v_accvgpr_write_b32 a%d, 0" % i)
    k.wvm(); k.e("s_barrier")
    BF = 128
    def rd(t, j, buf):
        base, o = (5, t*3072) if t < 14 else (6, (t-14)*3072)
        k.ds("ds_read_b64_tr_b16 %s, v%d offset:%d" % (vr(BF+buf*4, 2), base, o + j*64), (t, j))
        k.ds("ds_read_b64_tr_b16 %s, v%d offset:%d" % (vr(BF+buf*4+2, 2), base, o + j*64 + 768), (t, j))
    seq = [(t, j) for t in range(28) for j in range(3)]
    PF = 4
    for q in range(PF): rd(*seq[q], q % 6)
    for q, (t, j) in enumerate(seq):
        k.wlg((t, j))
        k.e("v_mfma_f32_32x32x16_bf16 %s, %s, %s, %s" % (ar(16*j, 16), vr(BF+(q % 6)*4, 4), vr(A0+4*t, 4), ar(16*j, 16)))
        if q + PF < len(seq): rd(*seq[q+PF], (q+PF) % 6)
    k.e("s_nop 15"); k.e("s_nop 3")
    k.e("v_and_b32 v3, 31, v1"); k.e("v_add_u32 v3, s28, v3"); k.e("v_mul_u32_u24 v3, 2688, v3")
    k.e("v_lshrrev_b32 v4, 5, v1"); k.e("v_lshl_add_u32 v3, v4, 3, v3")
    k.e("s_mul_i32 s30, s27, 192")
    for j in range(3):
        for q in range(4):
            b = 16*j + 4*q
            for r in range(4): k.e("v_accvgpr_read_b32 v%d, a%d" % (8+r, b+r))
            k.e("v_cvt_pk_bf16_f32 v12, v8, v9"); k.e("v_cvt_pk_bf16_f32 v13, v10, v11")
            k.vmem("buffer_store_dwordx2 v[12:13], v3, s[16:19], s30 offen offset:%d" % (j*64 + q*16))
            k.e("s_nop 1")
    k.label(k.name + "_end")
    return k, k.text(208, 160, 64), (224, 256, 86016)


def k2():
    k = K("k2_kernel")
    prologue(k, 256, [(0, 4), (2, 6), (9, 20)])
    k.srd(8, 4, S*D*2); k.srd(12, 6, D*D*2); k.srd(16, 20, S*1344*2, WS_QKV); k.srd(32, 20, S*D*2, WS_H)
    k.e("s_and_b32 s24, s2, 7"); k.e("s_lshr_b32 s25, s2, 3")
    k.e("s_and_b32 s27, s25, 1"); k.e("s_lshr_b32 s25, s25, 1")
    k.e("s_lshl_b32 s24, s24, 4"); k.e("s_add_u32 s24, s24, s25"); k.e("s_lshl_b32 s28, s24, 4")
    WB = 33152
    k.e("s_mul_i32 s29, s3, %d" % WB)
    k.e("v_mul_u32_u24 v2, 0x4925, v1"); k.e("v_lshrrev_b32 v2, 18, v2")
    k.e("v_mul_u32_u24 v3, 14, v2"); k.e("v_sub_u32 v3, v1, v3")
    k.e("s_sub_u32 s30, s28, 16"); k.e("v_add_u32 v4, s30, v2");
    k.e("s_mov_b32 s41, 2688"); k.e("v_mul_lo_u32 v4, v4, s41")
    k.e("v_lshl_add_u32 v4, v3, 4, v4"); k.e("s_mul_i32 s31, s3, 224"); k.e("s_add_u32 s31, s31, 1792"); k.e("v_add_u32 v4, s31, v4")
    k.e("s_mul_i32 s30, s3, 112"); k.e("v_add_u32 v5, s30, v2"); k.e("v_mul_u32_u24 v5, 896, v5")
    k.e("v_lshl_add_u32 v5, v3, 4, v5"); k.e("s_mul_i32 s30, s27, 448"); k.e("v_add_u32 v5, s30, v5")
    k.e("s_mov_b32 exec_hi, 0x00ffffff")
    for i in range(8):
        k.e("s_add_u32 s30, s29, %d" % (i*896)); k.e("s_mov_b32 m0, s30"); k.e("s_nop 0")
        k.vmem("buffer_load_dwordx4 v4, s[16:19], 0 offen lds", "V")
        k.e("v_add_u32 v4, %d, v4" % (4*2688))
    def wo_dma(half):
        k.e("s_mov_b32 exec_hi, 0x00ffffff")
        for i in range(29):
            k.e("s_add_u32 s30, s29, %d" % (7168 + i*896)); k.e("s_mov_b32 m0, s30")
            k.e("s_mov_b32 s31, %d" % (i*4*896 + half*224))
            k.vmem("buffer_load_dwordx4 v5, s[12:15], s31 offen lds", "W%d" % half)
        k.e("s_mov_b32 exec_hi, -1")
    wo_dma(0)
    k.e("v_and_b32 v7, 15, v1"); k.e("v_lshrrev_b32 v8, 4, v1")
    k.e("v_add_u32 v6, s28, v7"); k.e("v_mul_lo_u32 v6, v6, s41"); k.e("v_lshl_add_u32 v6, v8, 4, v6")
    k.e("s_mul_i32 s30, s3, 224"); k.e("v_add_u32 v6, s30, v6")
    k.e("v_add_u32 v9, %d, v6" % ((896 - 16*2688) & 0xffffffff))
    QF, KF = 64, 80
    for hh in range(4):
        k.vmem("buffer_load_dwordx4 %s, v6, s[16:19], 0 offen offset:%d" % (vr(QF+4*hh, 4), hh*56), "QK")
    for hh in range(4):
        k.vmem("buffer_load_dwordx4 %s, v9, s[16:19], 0 offen offset:%d" % (vr(KF+8*hh, 4), hh*56), "QK")
    k.e("v_add_u32 v9, %d, v9" % (16*2688))
    for hh in range(4):
        k.vmem("buffer_load_dwordx4 %s, v9, s[16:19], 0 offen offset:%d" % (vr(KF+8*hh+4, 4), hh*56), "QK")
    for t in range(2):
        for r in range(4):
            d = 16 + 4*t + r
            k.e("v_lshlrev_b32 v10, 2, v8"); k.e("v_add_u32 v10, %d, v10" % (16*t + r))
            k.e("v_sub_u32 v11, v7, v10"); k.e("v_add_u32 v11, 16, v11")
            k.e("v_add_u32 v12, s28, v10")
            k.e("v_mov_b32 v%d, 0xf149f2ca" % d)
            k.e("v_cmp_gt_u32 vcc, 15, v11"); k.e("s_nop 1"); k.e("v_cndmask_b32 v13, v%d, 0, vcc" % d) ; k.e("v_mov_b32 v14, v%d" % d)
            k.e("v_and_b32 v11, 1, v11"); k.e("v_cmp_eq_u32 vcc, 0, v11"); k.e("s_nop 1"); k.e("v_cndmask_b32 v13, v14, v13, vcc")
            k.e("v_cmp_le_u32 vcc, 16, v12"); k.e("s_nop 1"); k.e("v_cndmask_b32 v%d, v14, v13, vcc" % d)
    k.e("v_bfe_u32 v10, v1, 2, 4") ; k.e("v_mul_u32_u24 v10, 224, v10"); k.e("v_and_b32 v11, 3, v1"); k.e("v_lshl_add_u32 v10, v11, 3, v10")
    k.e("v_add_u32 v10, s29, v10")
    k.e("v_add_u32 v15, 7168, v10")
    k.e("v_cmp_gt_u32 s[42:43], 48, v1")
    k.wvm("QK")
    for hh in range(4):
        k.e("v_cndmask_b32 v%d, 0, v%d, s[42:43]" % (QF+4*hh+2, QF+4*hh+2)); k.e("v_cndmask_b32 v%d, 0, v%d, s[42:43]" % (QF+4*hh+3, QF+4*hh+3))
    k.e("s_nop 1")
    OF = 112
    SC = f2u(28**-0.5 * 1.4426950408889634)
    k.wvm("V")
    for hh in range(4):
        for t in range(2):
            k.e("v_mfma_f32_16x16x32_bf16 %s, %s, %s, 0" % (vr(24+4*t, 4), vr(KF+8*hh+4*t, 4), vr(QF+4*hh, 4)))
        for dt in range(2):
            k.ds("ds_read_b64_tr_b16 %s, v10 offset:%d" % (vr(40+4*dt, 2), hh*56+dt*32))
            k.ds("ds_read_b64_tr_b16 %s, v10 offset:%d" % (vr(42+4*dt, 2), hh*56+dt*32+16*224))
        k.e("s_nop 7")
        k.e("s_mov_b32 s44, 0x%x" % SC)
        for i in range(8): k.e("v_fma_f32 v%d, v%d, s44, v%d" % (24+i, 24+i, 16+i))
        k.e("v_max3_f32 v32, v24, v25, v26"); k.e("v_max3_f32 v33, v27, v28, v29"); k.e("v_max3_f32 v32, v32, v30, v31"); k.e("v_max_f32 v32, v32, v33")
        def xl(op):
            k.ds("ds_swizzle_b32 v33, v32 offset:0x401F"); k.wlg()
            k.e("%s v32, v32, v33" % op); k.e("v_mov_b32 v33, v32"); k.e("s_nop 1")
            k.e("v_permlane32_swap_b32 v32, v33"); k.e("s_nop 1"); k.e("%s v32, v32, v33" % op)
        xl("v_max_f32")
        for i in range(8): k.e("v_sub_f32 v%d, v%d, v32" % (24+i, 24+i))
        for i in range(8): k.e("v_exp_f32 v%d, v%d" % (24+i, 24+i))
        k.e("s_nop 0")
        k.e("v_add_f32 v32, v24, v25")
        for i in range(2, 8): k.e("v_add_f32 v32, v32, v%d" % (24+i))
        xl("v_add_f32")
        k.e("v_rcp_f32 v32, v32"); k.e("s_nop 0")
        for i in range(8): k.e("v_mul_f32 v%d, v%d, v32" % (24+i, 24+i))
        for i in range(4): k.e("v_cvt_pk_bf16_f32 v%d, v%d, v%d" % (36+i, 24+2*i, 25+2*i))
        k.e("s_nop 1")
        for dt in range(2):
            k.e("v_mfma_f32_16x16x32_bf16 %s, %s, %s, 0" % (vr(24+4*dt, 4), vr(40+4*dt, 4), vr(36, 4)))
        k.e("s_nop 8")
        for i in range(4): k.e("v_cndmask_b32 v%d, 0, v%d, s[42:43]" % (28+i, 28+i))
        for i in range(4): k.e("v_cvt_pk_bf16_f32 v%d, v%d, v%d" % (OF+4*hh+i, 24+2*i, 25+2*i))
    k.e("s_nop 1")
    for i in range(56): k.e("v_accvgpr_write_b32 a%d, 0" % i)
    for half in range(2):
        k.wvm("W%d" % half)
        seq = [(hh, n) for hh in range(4) for n in range(7)]
        def rd(q):
            hh, n = seq[q]; b = 40 + 4*(q % 4)
            k.ds("ds_read_b64_tr_b16 %s, v15 offset:%d" % (vr(b, 2), hh*28*224 + n*32), q)
            k.ds("ds_read_b64_tr_b16 %s, v15 offset:%d" % (vr(b+2, 2), (hh*28+16)*224 + n*32), q)
        for q in range(3): rd(q)
        for q, (hh, n) in enumerate(seq):
            k.wlg(q); a = 4*(7*half+n)
            k.e("v_mfma_f32_16x16x32_bf16 %s, %s, %s, %s" % (ar(a, 4), vr(40+4*(q % 4), 4), vr(OF+4*hh, 4), ar(a, 4)))
            if q+3 < len(seq): rd(q+3)
        if half == 0:
            k.wlg(); wo_dma(1)
    k.e("s_nop 8"); k.e("s_barrier")
    k.e("v_lshlrev_b32 v10, 2, v1"); k.e("s_mul_i32 s30, s3, 14336"); k.e("v_add_u32 v11, s30, v10")
    for i in range(56):
        k.e("v_accvgpr_read_b32 v12, a%d" % i); k.ds("ds_write_b32 v11, v12 offset:%d" % (i*256))
    k.wlg(); k.e("s_barrier")
    k.e("v_add_u32 v13, s28, v7"); k.e("v_mul_u32_u24 v13, 896, v13"); k.e("v_lshl_add_u32 v13, v8, 3, v13")
    k.e("s_mul_i32 s30, s27, 448"); k.e("v_add_u32 v13, s30, v13")
    k.e("s_lshl_b32 s30, s3, 5"); k.e("v_add_u32 v13, s30, v13")
    k.e("s_lshl_b32 s30, s3, 10"); k.e("v_add_u32 v10, s30, v10")
    for i in range(4):
        if i == 3:
            k.e("s_cmp_ge_u32 s3, 2"); k.e("s_cbranch_scc1 %s_end" % k.name)
        k.vmem("buffer_load_dwordx2 v[24:25], v13, s[8:11], 0 offen offset:%d" % (i*128), "X")
        for ww in range(4):
            for r in range(4):
                k.ds("ds_read_b32 v%d, v10 offset:%d" % (28+4*ww+r, ww*14336 + (i*16+r)*256))
        k.wlg(); k.wvm()
        for r in range(4):
            k.e("v_add_f32 v%d, v%d, v%d" % (28+r, 28+r, 32+r)); k.e("v_add_f32 v%d, v%d, v%d" % (36+r, 36+r, 40+r)); k.e("v_add_f32 v%d, v%d, v%d" % (28+r, 28+r, 36+r))
        k.e("v_lshlrev_b32 v32, 16, v24"); k.e("v_and_b32 v33, 0xffff0000, v24"); k.e("v_lshlrev_b32 v34, 16, v25"); k.e("v_and_b32 v35, 0xffff0000, v25")
        for r in range(4): k.e("v_add_f32 v%d, v%d, v%d" % (28+r, 28+r, 32+r))
        k.e("v_cvt_pk_bf16_f32 v36, v28, v29"); k.e("v_cvt_pk_bf16_f32 v37, v30, v31")
        k.vmem("buffer_store_dwordx2 v[36:37], v13, s[32:35], 0 offen offset:%d" % (i*128)); k.e("s_nop 1")
    k.label(k.name + "_end")
    return k, k.text(184, 128, 64), (256, 256, 4*WB)


def k3():
    k = K("k3_kernel")
    prologue(k, 256, [(4, 4), (5, 6), (9, 20)])
    k.srd(8, 20, S*D*2, WS_H); k.srd(12, 4, D*F*2); k.srd(36, 6, D*F*2); k.srd(16, 20, S*F*2, WS_ACT)
    k.e("s_and_b32 s24, s2, 7"); k.e("s_lshr_b32 s25, s2, 3")
    k.e("s_and_b32 s27, s25, 15"); k.e("s_lshr_b32 s25, s25, 4")
    k.e("s_lshl_b32 s24, s24, 1"); k.e("s_add_u32 s24, s24, s25")
    k.e("s_lshl_b32 s28, s24, 7"); k.e("s_lshl_b32 s29, s3, 5"); k.e("s_add_u32 s28, s28, s29")
    k.e("v_mul_u32_u24 v2, 0x4925, v1"); k.e("v_lshrrev_b32 v2, 18, v2")
    k.e("v_mul_u32_u24 v3, 14, v2"); k.e("v_sub_u32 v3, v1, v3")
    k.e("v_mul_u32_u24 v2, 3584, v2"); k.e("v_lshl_add_u32 v2, v3, 4, v2")
    k.e("s_mul_i32 s30, s27, 224"); k.e("v_add_u32 v2, s30, v2")
    IMG = 50176
    def dma(half):
        k.e("s_mov_b32 exec_hi, 0x00ffffff")
        k.e("s_mul_i32 s30, s3, %d" % (14*4*3584)); k.e("s_add_u32 s30, s30, %d" % (half*224*3584))
        k.e("s_mul_i32 s31, s3, %d" % (14*896))
        for i in range(14):
            for m, sr in ((0, 12), (1, 36)):
                k.e("s_add_u32 s33, s31, %d" % (m*IMG)); k.e("s_mov_b32 m0, s33"); k.e("s_nop 0")
                k.vmem("buffer_load_dwordx4 v2, s[%d:%d], s30 offen lds" % (sr, sr+3), "B")
            k.e("s_add_u32 s30, s30, %d" % (4*3584)); k.e("s_add_u32 s31, s31, 896")
        k.e("s_mov_b32 exec_hi, -1")
    dma(0)
    A0 = 16
    k.e("v_and_b32 v3, 31, v1"); k.e("v_add_u32 v3, s28, v3"); k.e("v_mul_u32_u24 v3, 896, v3")
    k.e("v_lshrrev_b32 v4, 5, v1"); k.e("v_lshl_add_u32 v3, v4, 4, v3")
    for t in range(28):
        k.vmem("buffer_load_dwordx4 %s, v3, s[8:11], 0 offen offset:%d" % (vr(A0+4*t, 4), t*32), "A")
    k.wvm("A")
    ln_in_regs(k, A0, 112, 4, 448)
    tr_base32(k, 5, 224, 6)
    k.e("v_bfe_u32 v7, v1, 4, 1"); k.e("v_mul_u32_u24 v7, %d, v7" % (IMG - 32 - 192)); k.e("v_add_u32 v6, v5, v7"); k.e("v_add_u32 v6, 192, v6")
    k.e("v_add_u32 v7, %d, v5" % (IMG + 32))
    for i in range(112): k.e("v_accvgpr_write_b32 a%d, 0" % i)
    BF = 128
    for half in range(2):
        k.wvm(); k.e("s_barrier")
        seq = [(t, j) for t in range(14) for j in range(7)]
        def rd(q):
            t, j = seq[q]; b = BF + 4*(q % 6)
            base, o = (5, j*64) if j < 3 else ((6, 0) if j == 3 else (7, (j-4)*64))
            k.ds("ds_read_b64_tr_b16 %s, v%d offset:%d" % (vr(b, 2), base, o + t*16*224), q)
            k.ds("ds_read_b64_tr_b16 %s, v%d offset:%d" % (vr(b+2, 2), base, o + t*16*224 + 896), q)
        for q in range(4): rd(q)
        for q, (t, j) in enumerate(seq):
            k.wlg(q)
            k.e("v_mfma_f32_32x32x16_bf16 %s, %s, %s, %s" % (ar(16*j, 16), vr(BF+4*(q % 6), 4), vr(A0+4*(14*half+t), 4), ar(16*j, 16)))
            if q+4 < len(seq): rd(q+4)
        if half == 0:
            k.wlg(); k.e("s_barrier"); dma(1)
    k.e("s_nop 15"); k.e("s_nop 3")
    k.e("v_and_b32 v3, 31, v1"); k.e("v_add_u32 v3, s28, v3"); k.e("v_mul_u32_u24 v3, 3584, v3")
    k.e("v_lshrrev_b32 v4, 5, v1"); k.e("v_lshl_add_u32 v3, v4, 3, v3")
    k.e("s_mul_i32 s30, s27, 224"); k.e("s_mov_b32 s31, 0x%x" % f2u(-1.4426950408889634))
    for gq in range(14):
        C = 8*gq; U = C + 112
        ga = 16*(C//32) + 4*((C % 32)//8); ua = 16*(U//32) + 4*((U % 32)//8)
        for r in range(4):
            k.e("v_accvgpr_read_b32 v%d, a%d" % (8+r, ga+r)); k.e("v_accvgpr_read_b32 v%d, a%d" % (12+r, ua+r))
        for r in range(4): k.e("v_mul_f32 v%d, s31, v%d" % (20+r, 8+r))
        for r in range(4): k.e("v_exp_f32 v%d, v%d" % (20+r, 20+r))
        k.e("s_nop 0")
        for r in range(4): k.e("v_add_f32 v%d, 1.0, v%d" % (20+r, 20+r))
        for r in range(4): k.e("v_rcp_f32 v%d, v%d" % (20+r, 20+r))
        k.e("s_nop 0")
        for r in range(4): k.e("v_mul_f32 v%d, v%d, v%d" % (8+r, 8+r, 20+r))
        for r in range(4): k.e("v_mul_f32 v%d, v%d, v%d" % (8+r, 8+r, 12+r))
        k.e("v_cvt_pk_bf16_f32 v24, v8, v9"); k.e("v_cvt_pk_bf16_f32 v25, v10, v11")
        k.vmem("buffer_store_dwordx2 v[24:25], v3, s[16:19], s30 offen offset:%d" % (gq*16)); k.e("s_nop 1")
    k.label(k.name + "_end")
    return k, k.text(272, 160, 64), (256, 256, 2*IMG)

def k4():
    k = K("k4_kernel")
    prologue(k, 224, [(6, 4), (7, 6), (9, 20)])
    k.srd(8, 20, S*F*2, WS_ACT); k.srd(12, 4, F*D*2); k.srd(16, 6, S*D*2); k.srd(32, 20, S*D*2, WS_H)
    k.e("s_and_b32 s24, s2, 7"); k.e("s_lshr_b32 s25, s2, 3")
    k.e("s_mul_i32 s26, s25, 37"); k.e("s_lshr_b32 s26, s26, 8")
    k.e("s_mul_i32 s27, s26, 7"); k.e("s_sub_u32 s27, s25, s27")
    k.e("s_lshl_b32 s24, s24, 2"); k.e("s_add_u32 s24, s24, s26"); k.e("s_lshl_b32 s28, s24, 6")
    NS = 8; RB = NS*2048
    k.e("s_mul_i32 s29, s3, %d" % RB)
    k.e("v_lshrrev_b32 v2, 3, v1"); k.e("s_mul_i32 s30, s3, 448"); k.e("v_add_u32 v2, s30, v2"); k.e("v_mul_u32_u24 v2, 896, v2")
    k.e("v_and_b32 v3, 7, v1"); k.e("v_lshl_add_u32 v2, v3, 4, v2"); k.e("s_lshl_b32 s30, s27, 7"); k.e("v_add_u32 v2, s30, v2")
    k.e("v_and_b32 v3, 31, v1"); k.e("v_add_u32 v3, s28, v3"); k.e("v_mul_u32_u24 v3, 3584, v3")
    k.e("v_lshrrev_b32 v4, 5, v1"); k.e("v_lshl_add_u32 v3, v4, 4, v3"); k.e("s_mul_i32 s30, s3, 896"); k.e("v_add_u32 v3, s30, v3")
    k.e("v_add_u32 v4, %d, v3" % (32*3584))
    tr_base32(k, 5, 128, 6); k.e("v_add_u32 v5, s29, v5")
    for i in range(64): k.e("v_accvgpr_write_b32 a%d, 0" % i)
    AF = 16; BF = 96
    def issue(t):
        sl = t % NS
        for hh in range(2):
            k.e("s_add_u32 s30, s29, %d" % (sl*2048 + hh*1024)); k.e("s_mov_b32 m0, s30"); k.e("s_mov_b32 s31, %d" % ((t*16+hh*8)*896))
            k.vmem("buffer_load_dwordx4 v2, s[12:15], s31 offen lds", t)
        k.vmem("buffer_load_dwordx4 %s, v3, s[8:11], 0 offen offset:%d" % (vr(AF+8*sl, 4), t*32), t)
        k.vmem("buffer_load_dwordx4 %s, v4, s[8:11], 0 offen offset:%d" % (vr(AF+8*sl+4, 4), t*32), t)
    for t in range(NS-1): issue(t)
    for t in range(28):
        sl = t % NS
        k.wvm(t)
        for j in range(2):
            k.ds("ds_read_b64_tr_b16 %s, v5 offset:%d" % (vr(BF+4*j, 2), sl*2048 + j*64))
            k.ds("ds_read_b64_tr_b16 %s, v5 offset:%d" % (vr(BF+4*j+2, 2), sl*2048 + j*64 + 512))
        k.wlg()
        for i in range(2):
            for j in range(2):
                a = 16*(2*i+j)
                k.e("v_mfma_f32_32x32x16_bf16 %s, %s, %s, %s" % (ar(a, 16), vr(BF+4*j, 4), vr(AF+8*sl+4*i, 4), ar(a, 16)))
        if t + NS - 1 < 28: issue(t+NS-1)
    k.e("s_nop 15"); k.e("s_nop 3"); k.e("s_barrier")
    k.e("v_lshlrev_b32 v10, 2, v1"); k.e("s_lshl_b32 s30, s3, 14"); k.e("v_add_u32 v11, s30, v10")
    for i in range(64):
        k.e("v_accvgpr_read_b32 v12, a%d" % i); k.ds("ds_write_b32 v11, v12 offset:%d" % (i*256))
    k.wlg(); k.e("s_barrier")
    k.e("s_lshr_b32 s30, s3, 1"); k.e("s_lshl_b32 s30, s30, 5"); k.e("s_add_u32 s30, s30, s28")
    k.e("v_and_b32 v13, 31, v1"); k.e("v_add_u32 v13, s30, v13"); k.e("v_mul_u32_u24 v13, 896, v13")
    k.e("v_lshrrev_b32 v14, 5, v1"); k.e("v_lshl_add_u32 v13, v14, 3, v13")
    k.e("s_and_b32 s30, s3, 1"); k.e("s_lshl_b32 s30, s30, 6"); k.e("s_lshl_b32 s31, s27, 7"); k.e("s_add_u32 s30, s30, s31"); k.e("v_add_u32 v13, s30, v13")
    k.e("s_lshl_b32 s30, s3, 12"); k.e("v_add_u32 v10, s30, v10")
    for q in range(4):
        k.vmem("buffer_load_dwordx2 v[24:25], v13, s[32:35], 0 offen offset:%d" % (q*16), "X")
        for ww in range(4):
            for r in range(4):
                k.ds("ds_read_b32 v%d, v10 offset:%d" % (28+4*ww+r, ww*16384 + (q*4+r)*256))
        k.wlg(); k.wvm()
        for r in range(4):
            k.e("v_add_f32 v%d, v%d, v%d" % (28+r, 28+r, 32+r)); k.e("v_add_f32 v%d, v%d, v%d" % (36+r, 36+r, 40+r)); k.e("v_add_f32 v%d, v%d, v%d" % (28+r, 28+r, 36+r))
        k.e("v_lshlrev_b32 v32, 16, v24"); k.e("v_and_b32 v33, 0xffff0000, v24"); k.e("v_lshlrev_b32 v34, 16, v25"); k.e("v_and_b32 v35, 0xffff0000, v25")
        for r in range(4): k.e("v_add_f32 v%d, v%d, v%d" % (28+r, 28+r, 32+r))
        k.e("v_cvt_pk_bf16_f32 v36, v28, v29"); k.e("v_cvt_pk_bf16_f32 v37, v30, v31")
        k.vmem("buffer_store_dwordx2 v[36:37], v13, s[16:19], 0 offen offset:%d" % (q*16)); k.e("s_nop 1")
    k.label(k.name + "_end")
    return k, k.text(176, 112, 64), (224, 256, 65536)

KERNELS = [k1, k2, k3, k4]
def main():
    ks = [f() for f in KERNELS]
    hdr = open("cdna_kernels/%s.s.ref" % NAME).read().split("\n")
    out = [l for l in hdr if l.startswith(";") and "@launch" not in l and "Override" not in l and "grid=ceil" not in l]
    for k, _, (g, b, lds) in ks:
        out.append("; @launch kernel=%s grid=(%d,1,1) block=(%d,1,1) lds=%d" % (k.name, g, b, lds))
    out += ['.amdgcn_target "amdgcn-amd-amdhsa--gfx950"', ".text"]
    for k, (t, kd), _ in ks: out.append(t)
    out += ['.section .rodata,"a"']
    for k, (t, kd), _ in ks: out += [".p2align 6", kd]
    open("cdna_kernels/%s.s" % NAME, "w").write("\n".join(out) + "\n")
main()
```

```python
import sys
STAMP = len(sys.argv) > 1
NAME = "sequential_preLN__sliding_local_dilated__swiglu_ffn__prompt"
WS_QKV = 0
WS_H = 0x600000
WS_ACT = 0x800000
S = 2048; D = 448; F = 1792

class K:
    def __init__(s, name):
        s.name = name; s.L = []; s.vm = []; s.lg = []; s.lab = 0
    def e(s, x): s.L.append("    " + x)
    def c(s, x): s.L.append("    ; " + x)
    def label(s, x): s.L.append(x + ":")
    def vmem(s, x, tag=None): s.e(x); s.vm.append(tag)
    def ds(s, x, tag=None): s.e(x); s.lg.append(tag)
    def wvm(s, tag=None):
        if tag is None:
            s.e("s_waitcnt vmcnt(0)"); s.vm = []; return
        if tag not in s.vm: return
        i = len(s.vm) - 1 - s.vm[::-1].index(tag)
        n = len(s.vm) - 1 - i
        s.e("s_waitcnt vmcnt(%d)" % min(n, 63)); s.vm = s.vm[i+1:]
    def wlg(s, tag=None):
        if tag is None:
            s.e("s_waitcnt lgkmcnt(0)"); s.lg = []; return
        if tag not in s.lg: return
        i = len(s.lg) - 1 - s.lg[::-1].index(tag)
        n = len(s.lg) - 1 - i
        s.e("s_waitcnt lgkmcnt(%d)" % min(n, 15)); s.lg = s.lg[i+1:]
    def stamp(s, i):
        if not STAMP: return
        s.e("s_memtime s[50:51]"); s.e("s_waitcnt lgkmcnt(0)"); s.lg = []
        s.e("v_mov_b32 v%d, s50" % s.stv)
        s.e("s_or_b32 s56, s2, s3"); s.e("s_cmp_lg_u32 s56, 0"); s.e("s_cselect_b32 s56, 0x10000, %d" % (4*i))
        s.e("v_mov_b32 v%d, s56" % (s.stv+1))
        s.e("buffer_store_dword v%d, v%d, s[52:55], 0 offen" % (s.stv, s.stv+1)); s.vm.append(None)
    def srd(s, d, ptr, nbytes, off=0):
        if off:
            s.e("s_add_u32 s%d, s%d, 0x%x" % (d, ptr, off)); s.e("s_addc_u32 s%d, s%d, 0" % (d+1, ptr+1))
        else:
            s.e("s_mov_b32 s%d, s%d" % (d, ptr)); s.e("s_mov_b32 s%d, s%d" % (d+1, ptr+1))
        s.e("s_mov_b32 s%d, 0x%x" % (d+2, nbytes)); s.e("s_mov_b32 s%d, 0x00020000" % (d+3))
    def text(s, nv, acc, nsg=64):
        out = [".globl %s" % s.name, ".p2align 8", ".type %s,@function" % s.name, "%s:" % s.name] + s.L + ["    s_endpgm"]
        kd = [".amdhsa_kernel %s" % s.name, "  .amdhsa_next_free_vgpr %d" % nv, "  .amdhsa_next_free_sgpr %d" % nsg,
              "  .amdhsa_accum_offset %d" % acc, "  .amdhsa_group_segment_fixed_size 0", "  .amdhsa_kernarg_size 80",
              "  .amdhsa_user_sgpr_count 2", "  .amdhsa_user_sgpr_kernarg_segment_ptr 1", "  .amdhsa_system_sgpr_workgroup_id_x 1", ".end_amdhsa_kernel"]
        return "\n".join(out), "\n".join(kd)

def vr(b, n): return "v[%d:%d]" % (b, b+n-1)
def ar(b, n): return "a[%d:%d]" % (b, b+n-1)

def prologue(k, nwg, args):
    for slot, sr in args:
        k.e("s_load_dwordx2 s[%d:%d], s[0:1], %d" % (sr, sr+1, slot*8))
    k.e("s_cmp_ge_u32 s2, %d" % nwg)
    k.e("s_cbranch_scc1 %s_end" % k.name)
    k.e("v_lshrrev_b32 v2, 6, v0")
    k.e("v_and_b32 v1, 63, v0")
    k.e("s_nop 0")
    k.e("v_readfirstlane_b32 s3, v2")
    k.e("s_waitcnt lgkmcnt(0)")
    if STAMP:
        k.e("s_load_dwordx2 s[52:53], s[0:1], 64"); k.e("s_waitcnt lgkmcnt(0)"); k.e("s_mov_b32 s54, 256"); k.e("s_mov_b32 s55, 0x00020000")
        k.stamp(0)

def ln_in_regs(k, A0, nd, t0, kdim):
    s0, s1, q0, q1, m, r, t1, t2 = range(t0, t0+8)
    k.e("s_mov_b32 s40, 0x3f803f80")
    for x in (s0, s1, q0, q1): k.e("v_mov_b32 v%d, 0" % x)
    for i in range(nd):
        k.e("v_dot2_f32_bf16 v%d, v%d, s40, v%d" % ((s0, s1)[i&1], A0+i, (s0, s1)[i&1]))
        k.e("v_dot2_f32_bf16 v%d, v%d, v%d, v%d" % ((q0, q1)[i&1], A0+i, A0+i, (q0, q1)[i&1]))
    k.e("s_nop 3")
    k.e("v_add_f32 v%d, v%d, v%d" % (s0, s0, s1))
    k.e("v_add_f32 v%d, v%d, v%d" % (q0, q0, q1))
    k.e("v_mov_b32 v%d, v%d" % (s1, s0)); k.e("v_mov_b32 v%d, v%d" % (q1, q0))
    k.e("s_nop 1")
    k.e("v_permlane32_swap_b32 v%d, v%d" % (s0, s1))
    k.e("v_permlane32_swap_b32 v%d, v%d" % (q0, q1))
    k.e("s_nop 1")
    k.e("v_add_f32 v%d, v%d, v%d" % (s0, s0, s1))
    k.e("v_add_f32 v%d, v%d, v%d" % (q0, q0, q1))
    k.e("v_mul_f32 v%d, 0x%08x, v%d" % (m, f2u(1.0/kdim), s0))
    k.e("v_mul_f32 v%d, 0x%08x, v%d" % (q0, f2u(1.0/kdim), q0))
    k.e("v_fma_f32 v%d, -v%d, v%d, v%d" % (q0, m, m, q0))
    k.e("v_add_f32 v%d, 0x%08x, v%d" % (q0, f2u(1e-5), q0))
    k.e("v_rsq_f32 v%d, v%d" % (r, q0))
    k.e("s_nop 0")
    k.e("v_mul_f32 v%d, v%d, v%d" % (m, m, r))
    k.e("v_sub_f32 v%d, 0, v%d" % (m, m))
    for i in range(nd):
        k.e("v_lshlrev_b32 v%d, 16, v%d" % (t1, A0+i))
        k.e("v_and_b32 v%d, 0xffff0000, v%d" % (t2, A0+i))
        k.e("v_fma_f32 v%d, v%d, v%d, v%d" % (t1, t1, r, m))
        k.e("v_fma_f32 v%d, v%d, v%d, v%d" % (t2, t2, r, m))
        k.e("v_cvt_pk_bf16_f32 v%d, v%d, v%d" % (A0+i, t1, t2))
    k.e("s_nop 1")

import struct
def f2u(f): return struct.unpack("<I", struct.pack("<f", f))[0]

def tr_base32(k, dst, rowb, tmp):
    k.e("v_lshrrev_b32 v%d, 5, v1" % dst)
    k.e("v_bfe_u32 v%d, v1, 2, 2" % tmp)
    k.e("v_lshl_add_u32 v%d, v%d, 3, v%d" % (dst, dst, tmp))
    k.e("v_mul_u32_u24 v%d, %d, v%d" % (dst, rowb, dst))
    k.e("v_bfe_u32 v%d, v1, 4, 1" % tmp)
    k.e("v_lshl_add_u32 v%d, v%d, 5, v%d" % (dst, tmp, dst))
    k.e("v_and_b32 v%d, 3, v1" % tmp)
    k.e("v_lshl_add_u32 v%d, v%d, 3, v%d" % (dst, tmp, dst))


def ln16(k, A0, nd, t0, kdim):
    s0, s1, q0, q1, m, r, t1, t2 = range(t0, t0+8)
    k.e("s_mov_b32 s40, 0x3f803f80")
    for x in (s0, s1, q0, q1): k.e("v_mov_b32 v%d, 0" % x)
    for i in range(nd):
        k.e("v_dot2_f32_bf16 v%d, v%d, s40, v%d" % ((s0, s1)[i&1], A0+i, (s0, s1)[i&1]))
        k.e("v_dot2_f32_bf16 v%d, v%d, v%d, v%d" % ((q0, q1)[i&1], A0+i, A0+i, (q0, q1)[i&1]))
    k.e("s_nop 3")
    k.e("v_add_f32 v%d, v%d, v%d" % (s0, s0, s1)); k.e("v_add_f32 v%d, v%d, v%d" % (q0, q0, q1))
    k.ds("ds_swizzle_b32 v%d, v%d offset:0x401F" % (s1, s0)); k.ds("ds_swizzle_b32 v%d, v%d offset:0x401F" % (q1, q0)); k.wlg()
    k.e("v_add_f32 v%d, v%d, v%d" % (s0, s0, s1)); k.e("v_add_f32 v%d, v%d, v%d" % (q0, q0, q1))
    k.e("v_mov_b32 v%d, v%d" % (s1, s0)); k.e("v_mov_b32 v%d, v%d" % (q1, q0)); k.e("s_nop 1")
    k.e("v_permlane32_swap_b32 v%d, v%d" % (s0, s1)); k.e("v_permlane32_swap_b32 v%d, v%d" % (q0, q1)); k.e("s_nop 1")
    k.e("v_add_f32 v%d, v%d, v%d" % (s0, s0, s1)); k.e("v_add_f32 v%d, v%d, v%d" % (q0, q0, q1))
    k.e("v_mul_f32 v%d, 0x%08x, v%d" % (m, f2u(1.0/kdim), s0)); k.e("v_mul_f32 v%d, 0x%08x, v%d" % (q0, f2u(1.0/kdim), q0))
    k.e("v_fma_f32 v%d, -v%d, v%d, v%d" % (q0, m, m, q0)); k.e("v_add_f32 v%d, 0x%08x, v%d" % (q0, f2u(1e-5), q0))
    k.e("v_rsq_f32 v%d, v%d" % (r, q0)); k.e("s_nop 0")
    k.e("v_mul_f32 v%d, v%d, v%d" % (m, m, r)); k.e("v_sub_f32 v%d, 0, v%d" % (m, m))
    for i in range(nd):
        k.e("v_lshlrev_b32 v%d, 16, v%d" % (t1, A0+i)); k.e("v_and_b32 v%d, 0xffff0000, v%d" % (t2, A0+i))
        k.e("v_fma_f32 v%d, v%d, v%d, v%d" % (t1, t1, r, m)); k.e("v_fma_f32 v%d, v%d, v%d, v%d" % (t2, t2, r, m))
        k.e("v_cvt_pk_bf16_f32 v%d, v%d, v%d" % (A0+i, t1, t2))
    k.e("s_nop 1")

def tr_base16(k, dst, rowb, tmp):
    k.e("v_lshrrev_b32 v%d, 4, v1" % dst); k.e("v_bfe_u32 v%d, v1, 2, 2" % tmp)
    k.e("v_lshl_add_u32 v%d, v%d, 3, v%d" % (dst, dst, tmp)); k.e("v_mul_u32_u24 v%d, %d, v%d" % (dst, rowb, dst))
    k.e("v_and_b32 v%d, 3, v1" % tmp); k.e("v_lshl_add_u32 v%d, v%d, 3, v%d" % (dst, tmp, dst))

def load_a16(k, A0, srd, rowreg):
    k.e("v_and_b32 v3, 15, v1"); k.e("v_add_u32 v3, %s, v3" % rowreg); k.e("v_mul_u32_u24 v3, 896, v3")
    k.e("v_lshrrev_b32 v4, 4, v1"); k.e("v_lshl_add_u32 v3, v4, 4, v3"); k.e("v_add_u32 v4, %d, v3" % (16*896))
    for i in range(2):
        for t in range(14):
            k.vmem("buffer_load_dwordx4 %s, v%d, s[%d:%d], 0 offen offset:%d" % (vr(A0+56*i+4*t, 4), 3+i, srd, srd+3, t*64), "A")


APITCH = 912
def gemm_ln(k, MT, asrd, slot_bytes, nearly, slot_addr, dma_slot, ntile, rd_addr, acc_of, syncs):
    A0 = 16; ABASE = 0
    k.e("v_lshlrev_b32 v4, 4, v1")
    k.e("s_mul_i32 s30, s3, %d" % (MT//8)); k.e("s_add_u32 s31, s36, s30"); k.e("s_mul_i32 s31, s31, 896")
    k.e("s_mul_i32 s30, s30, %d" % APITCH)
    k.e("s_mov_b32 exec_hi, 0x00ffffff")
    for i in range(MT//8):
        k.e("s_mov_b32 m0, s30"); k.e("s_nop 0")
        k.vmem("buffer_load_dwordx4 v4, s[%d:%d], s31 offen lds" % (asrd, asrd+3), "A")
        k.e("s_add_u32 s30, s30, %d" % APITCH); k.e("s_add_u32 s31, s31, 896")
    k.e("s_mov_b32 exec_hi, -1")
    for sl in range(nearly): dma_slot(sl, slot_addr(sl))
    for i in range(8*ntile): k.e("v_accvgpr_write_b32 a%d, 0" % i)
    k.e("v_and_b32 v3, 15, v1"); k.e("v_add_u32 v3, s37, v3"); k.e("v_mul_u32_u24 v3, %d, v3" % APITCH)
    k.e("v_lshrrev_b32 v4, 4, v1"); k.e("v_lshl_add_u32 v3, v4, 4, v3")
    k.stamp(1); k.wvm("A"); k.e("s_barrier"); k.stamp(2)
    k.e("v_lshrrev_b32 v8, 3, v1"); k.e("s_mul_i32 s30, s3, %d" % (MT//8)); k.e("v_add_u32 v8, s30, v8"); k.e("v_mul_u32_u24 v8, %d, v8" % APITCH)
    k.e("v_and_b32 v9, 7, v1"); k.e("v_mul_u32_u24 v9, 112, v9"); k.e("v_add_u32 v8, v8, v9")
    k.e("s_mov_b32 s40, 0x3f803f80")
    for ps in range(MT//64):
        R0 = A0
        for j in range(7): k.ds("ds_read_b128 %s, v8 offset:%d" % (vr(R0+4*j, 4), ps*8*APITCH + j*16))
        s0, s1, q0, q1, m, r, t1, t2 = range(48, 56)
        for x in (s0, s1, q0, q1): k.e("v_mov_b32 v%d, 0" % x)
        k.wlg()
        if ps == 0: k.stamp(9)
        for i in range(28):
            k.e("v_dot2_f32_bf16 v%d, v%d, s40, v%d" % ((s0, s1)[i&1], R0+i, (s0, s1)[i&1]))
            k.e("v_dot2_f32_bf16 v%d, v%d, v%d, v%d" % ((q0, q1)[i&1], R0+i, R0+i, (q0, q1)[i&1]))
        k.e("s_nop 3")
        k.e("v_add_f32 v%d, v%d, v%d" % (s0, s0, s1)); k.e("v_add_f32 v%d, v%d, v%d" % (q0, q0, q1))
        for dpp in ("quad_perm:[1,0,3,2]", "quad_perm:[2,3,0,1]", "row_half_mirror"):
            k.e("s_nop 1")
            k.e("v_add_f32_dpp v%d, v%d, v%d %s row_mask:0xf bank_mask:0xf" % (s1, s0, s0, dpp))
            k.e("v_add_f32_dpp v%d, v%d, v%d %s row_mask:0xf bank_mask:0xf" % (q1, q0, q0, dpp))
            k.e("v_mov_b32 v%d, v%d" % (s0, s1)); k.e("v_mov_b32 v%d, v%d" % (q0, q1))
        k.e("v_mul_f32 v%d, 0x%08x, v%d" % (m, f2u(1.0/448), s0)); k.e("v_mul_f32 v%d, 0x%08x, v%d" % (q0, f2u(1.0/448), q0))
        k.e("v_fma_f32 v%d, -v%d, v%d, v%d" % (q0, m, m, q0)); k.e("v_add_f32 v%d, 0x%08x, v%d" % (q0, f2u(1e-5), q0))
        k.e("v_rsq_f32 v%d, v%d" % (r, q0)); k.e("s_nop 0")
        k.e("v_mul_f32 v%d, v%d, v%d" % (m, m, r)); k.e("v_sub_f32 v%d, 0, v%d" % (m, m))
        if ps == 0: k.stamp(10)
        for i in range(28):
            k.e("v_lshlrev_b32 v%d, 16, v%d" % (t1, R0+i)); k.e("v_and_b32 v%d, 0xffff0000, v%d" % (t2, R0+i))
            k.e("v_fma_f32 v%d, v%d, v%d, v%d" % (t1, t1, r, m)); k.e("v_fma_f32 v%d, v%d, v%d, v%d" % (t2, t2, r, m))
            k.e("v_cvt_pk_bf16_f32 v%d, v%d, v%d" % (R0+i, t1, t2))
        for j in range(7): k.ds("ds_write_b128 v8, %s offset:%d" % (vr(R0+4*j, 4), ps*8*APITCH + j*16))
        k.wlg()
    k.stamp(11); k.e("s_barrier"); k.stamp(12)
    for i in range(2):
        for t in range(14):
            k.ds("ds_read_b128 %s, v3 offset:%d" % (vr(A0+56*i+4*t, 4), i*16*APITCH + t*64))
    k.wlg(); k.e("s_barrier")
    nfix = min(14, (163840 // slot_bytes))
    for sl in range(nearly, nfix): dma_slot(sl, slot_addr(sl))
    k.stamp(3)
    BF = 128
    seq = [(t, q) for t in range(14) for q in range(ntile)]
    def rd(n):
        t, q = seq[n]; b = BF + 4*(n % 4); base, o = rd_addr(q, slot_addr(t))
        k.ds("ds_read_b64_tr_b16 %s, v%d offset:%d" % (vr(b, 2), base, o[0]), n)
        k.ds("ds_read_b64_tr_b16 %s, v%d offset:%d" % (vr(b+2, 2), base, o[1]), n)
    issued = 0
    for n, (t, q) in enumerate(seq):
        if q == 0 and t in syncs:
            last, extra = syncs[t]
            k.wvm(("B", last)); k.e("s_barrier")
            if t: k.stamp(6 + list(syncs).index(t))
            for sl in extra: dma_slot(sl, slot_addr(sl))
            nxt = min([x for x in syncs if x > t] + [14]) * ntile
        while issued < min(n + 3, nxt): rd(issued); issued += 1
        k.wlg(n)
        for i in range(2):
            a = acc_of(i, q)
            k.e("v_mfma_f32_16x16x32_bf16 %s, %s, %s, %s" % (ar(a, 4), vr(BF+4*(n % 4), 4), vr(A0+56*i+4*t, 4), ar(a, 4)))
    k.e("s_nop 8"); k.stamp(5)

def k1():
    k = K("k1_kernel"); k.stv = 158
    prologue(k, 224, [(0, 4), (1, 6), (9, 20)])
    k.srd(8, 4, S*D*2); k.srd(12, 6, D*1344*2); k.srd(16, 20, S*1344*2, WS_QKV)
    k.e("s_and_b32 s24, s2, 7"); k.e("s_lshr_b32 s25, s2, 3")
    k.e("s_mul_i32 s26, s25, 37"); k.e("s_lshr_b32 s26, s26, 8")
    k.e("s_mul_i32 s27, s26, 7"); k.e("s_sub_u32 s27, s25, s27")
    k.e("s_lshl_b32 s24, s24, 2"); k.e("s_add_u32 s24, s24, s26"); k.e("s_lshl_b32 s36, s24, 6")
    k.e("s_and_b32 s34, s3, 1"); k.e("s_lshr_b32 s35, s3, 1")
    k.e("s_lshl_b32 s37, s34, 5"); k.e("s_add_u32 s28, s36, s37")
    k.e("v_cmp_le_u32 vcc, 24, v1"); k.e("v_subrev_u32 v3, 24, v1"); k.e("s_nop 0"); k.e("v_cndmask_b32 v3, v1, v3, vcc")
    k.e("v_cndmask_b32 v2, 0, 1, vcc"); k.e("v_mul_u32_u24 v2, 2688, v2")
    k.e("s_and_b32 s38, s3, 2"); k.e("v_xor_b32 v3, s38, v3"); k.e("v_lshl_add_u32 v2, v3, 4, v2")
    k.e("s_mul_i32 s38, s27, 384"); k.e("s_mul_i32 s39, s3, %d" % (4*2688)); k.e("s_add_u32 s38, s38, s39")
    k.e("s_mul_i32 s39, s3, %d" % (4*384))
    SB = 32*384
    ABYTES = 64*APITCH
    def slot_addr(sl):
        sl = sl % 13
        return 65536 + sl*SB if sl < 8 else (sl-8)*SB
    def dma_slot(sl, addr):
        k.e("s_mov_b32 exec_hi, 0xffff")
        for i in range(2):
            k.e("s_add_u32 s30, s39, %d" % (addr + i*768)); k.e("s_mov_b32 m0, s30")
            k.e("s_add_u32 s31, s38, %d" % ((sl*32 + 2*i)*2688))
            k.vmem("buffer_load_dwordx4 v2, s[12:15], s31 offen lds", ("B", sl))
        k.e("s_mov_b32 exec_hi, -1")
    tr_base16(k, 5, 384, 6)
    k.e("s_mul_i32 s29, s35, 96")
    k.e("v_bfe_u32 v8, v1, 4, 1"); k.e("v_lshlrev_b32 v8, 5, v8")
    k.e("v_and_b32 v9, 31, v5"); k.e("v_sub_u32 v10, v5, v9")
    for q in range(3):
        k.e("v_add_u32 v11, %d, v9" % (q*32)); k.e("v_add_u32 v11, s29, v11"); k.e("v_xor_b32 v11, v8, v11"); k.e("v_add_u32 v%d, v10, v11" % (5+q) if q else "v_add_u32 v12, v10, v11")
    k.e("v_mov_b32 v5, v12")
    for q in range(3):
        k.e("v_add_u32 v%d, 65536, v%d" % (152+q, 5+q)); k.e("v_add_u32 v%d, 131072, v%d" % (155+q, 5+q))
    def rd_addr(q, addr):
        w = addr // 65536; o = addr % 65536
        assert o + 4*384 + 12288 <= 65536 + 12288
        return (5+q, 152+q, 155+q)[w], (o, o + 4*384)
    gemm_ln(k, 64, 8, SB, 8, slot_addr, dma_slot, 3, rd_addr, lambda i, q: 4*(3*i+q), {0: (7, []), 8: (12, [13]), 13: (13, [])})
    k.e("v_and_b32 v3, 15, v1"); k.e("v_add_u32 v3, s28, v3"); k.e("v_mul_u32_u24 v3, 2688, v3")
    k.e("v_lshrrev_b32 v4, 4, v1"); k.e("v_lshl_add_u32 v3, v4, 3, v3"); k.e("v_add_u32 v4, %d, v3" % (16*2688))
    k.e("s_mul_i32 s30, s27, 384"); k.e("s_add_u32 s30, s30, s29")
    for i in range(2):
        for j in range(3):
            b = 4*(3*i+j)
            for r in range(4): k.e("v_accvgpr_read_b32 v%d, a%d" % (8+r, b+r))
            k.e("v_cvt_pk_bf16_f32 v12, v8, v9"); k.e("v_cvt_pk_bf16_f32 v13, v10, v11")
            k.vmem("buffer_store_dwordx2 v[12:13], v%d, s[16:19], s30 offen offset:%d" % (3+i, j*32)); k.e("s_nop 1")
    k.wvm(); k.stamp(4)
    k.label(k.name + "_end")
    return k, k.text(184, 160, 64), (224, 512, 163840)

def k2():
    k = K("k2_kernel"); k.stv = 110
    prologue(k, 256, [(0, 4), (2, 6), (9, 20)])
    k.srd(8, 4, S*D*2); k.srd(12, 6, D*D*2); k.srd(16, 20, S*1344*2, WS_QKV); k.srd(32, 20, S*D*2, WS_H)
    k.e("s_and_b32 s24, s2, 7"); k.e("s_lshr_b32 s25, s2, 3")
    k.e("s_and_b32 s27, s25, 1"); k.e("s_lshr_b32 s25, s25, 1")
    k.e("s_lshl_b32 s24, s24, 4"); k.e("s_add_u32 s24, s24, s25"); k.e("s_lshl_b32 s28, s24, 4")
    VB = 32*128; WOB = 60*224; WB = VB + WOB
    k.e("s_mul_i32 s29, s3, %d" % WB)
    k.e("s_mov_b32 s41, 2688")
    k.e("v_lshrrev_b32 v2, 3, v1"); k.e("v_and_b32 v3, 7, v1")
    k.e("s_sub_u32 s30, s28, 16"); k.e("v_add_u32 v4, s30, v2"); k.e("v_mul_lo_u32 v4, v4, s41")
    k.e("v_lshl_add_u32 v4, v3, 4, v4"); k.e("s_mul_i32 s31, s3, 112"); k.e("s_add_u32 s31, s31, 1792"); k.e("v_add_u32 v4, s31, v4")
    for i in range(4):
        k.e("s_add_u32 s30, s29, %d" % (i*1024)); k.e("s_mov_b32 m0, s30"); k.e("s_nop 0")
        k.vmem("buffer_load_dwordx4 v4, s[16:19], 0 offen lds", "V")
        k.e("v_add_u32 v4, %d, v4" % (8*2688))
    k.e("v_mul_u32_u24 v2, 0x4925, v1"); k.e("v_lshrrev_b32 v2, 18, v2")
    k.e("v_mul_u32_u24 v3, 14, v2"); k.e("v_sub_u32 v3, v1, v3")
    k.e("s_mul_i32 s30, s3, 56"); k.e("v_add_u32 v5, s30, v2"); k.e("v_mul_u32_u24 v5, 896, v5")
    k.e("v_lshl_add_u32 v5, v3, 4, v5"); k.e("s_mul_i32 s30, s27, 448"); k.e("v_add_u32 v5, s30, v5")
    def wo_dma(half):
        k.e("s_mov_b32 exec_hi, 0x00ffffff")
        for i in range(15):
            k.e("s_add_u32 s30, s29, %d" % (VB + i*896)); k.e("s_mov_b32 m0, s30")
            k.e("s_mov_b32 s31, %d" % (i*4*896 + half*224))
            k.vmem("buffer_load_dwordx4 v5, s[12:15], s31 offen lds", "W%d" % half)
        k.e("s_mov_b32 exec_hi, -1")
    wo_dma(0)
    k.e("v_and_b32 v7, 15, v1"); k.e("v_lshrrev_b32 v8, 4, v1")
    k.e("v_add_u32 v6, s28, v7"); k.e("v_mul_lo_u32 v6, v6, s41"); k.e("v_lshl_add_u32 v6, v8, 4, v6")
    k.e("s_mul_i32 s30, s3, 112"); k.e("v_add_u32 v6, s30, v6")
    k.e("v_add_u32 v9, %d, v6" % ((896 - 16*2688) & 0xffffffff))
    QF, KF = 64, 72
    NH = 2
    for hh in range(NH):
        k.vmem("buffer_load_dwordx4 %s, v6, s[16:19], 0 offen offset:%d" % (vr(QF+4*hh, 4), hh*56), "QK")
    for hh in range(NH):
        k.vmem("buffer_load_dwordx4 %s, v9, s[16:19], 0 offen offset:%d" % (vr(KF+8*hh, 4), hh*56), "QK")
    k.e("v_add_u32 v9, %d, v9" % (16*2688))
    for hh in range(NH):
        k.vmem("buffer_load_dwordx4 %s, v9, s[16:19], 0 offen offset:%d" % (vr(KF+8*hh+4, 4), hh*56), "QK")
    for t in range(2):
        for r in range(4):
            d = 16 + 4*t + r
            k.e("v_lshlrev_b32 v10, 2, v8"); k.e("v_add_u32 v10, %d, v10" % (16*t + r))
            k.e("v_sub_u32 v11, v7, v10"); k.e("v_add_u32 v11, 16, v11")
            k.e("v_add_u32 v12, s28, v10")
            k.e("v_mov_b32 v%d, 0xf149f2ca" % d)
            k.e("v_cmp_gt_u32 vcc, 15, v11"); k.e("s_nop 1"); k.e("v_cndmask_b32 v13, v%d, 0, vcc" % d) ; k.e("v_mov_b32 v14, v%d" % d)
            k.e("v_and_b32 v11, 1, v11"); k.e("v_cmp_eq_u32 vcc, 0, v11"); k.e("s_nop 1"); k.e("v_cndmask_b32 v13, v14, v13, vcc")
            k.e("v_cmp_le_u32 vcc, 16, v12"); k.e("s_nop 1"); k.e("v_cndmask_b32 v%d, v14, v13, vcc" % d)
    k.e("v_bfe_u32 v10, v1, 2, 4"); k.e("v_and_b32 v11, 3, v1"); k.e("v_lshlrev_b32 v11, 3, v11")
    k.e("v_mul_u32_u24 v15, 224, v10"); k.e("v_add3_u32 v15, v15, v11, s29"); k.e("v_add_u32 v15, %d, v15" % VB)
    k.e("v_lshl_add_u32 v10, v10, 7, v11"); k.e("v_add_u32 v10, s29, v10")
    k.e("v_cmp_gt_u32 s[42:43], 48, v1")
    for i in range(56): k.e("v_accvgpr_write_b32 a%d, 0" % i)
    k.wvm("QK")
    for hh in range(NH):
        k.e("v_cndmask_b32 v%d, 0, v%d, s[42:43]" % (QF+4*hh+2, QF+4*hh+2)); k.e("v_cndmask_b32 v%d, 0, v%d, s[42:43]" % (QF+4*hh+3, QF+4*hh+3))
    k.e("s_nop 1")
    OF = 96
    SC = f2u(28**-0.5 * 1.4426950408889634)
    for hh in range(NH):
        for t in range(2):
            k.e("v_mfma_f32_16x16x32_bf16 %s, %s, %s, 0" % (vr(24+4*t, 4), vr(KF+8*hh+4*t, 4), vr(QF+4*hh, 4)))
        for dt in range(2):
            k.ds("ds_read_b64_tr_b16 %s, v10 offset:%d" % (vr(40+4*dt, 2), hh*56+dt*32))
            k.ds("ds_read_b64_tr_b16 %s, v10 offset:%d" % (vr(42+4*dt, 2), hh*56+dt*32+16*128))
        k.e("s_nop 7")
        k.e("s_mov_b32 s44, 0x%x" % SC)
        for i in range(8): k.e("v_fma_f32 v%d, v%d, s44, v%d" % (24+i, 24+i, 16+i))
        k.e("v_max3_f32 v32, v24, v25, v26"); k.e("v_max3_f32 v33, v27, v28, v29"); k.e("v_max3_f32 v32, v32, v30, v31"); k.e("v_max_f32 v32, v32, v33")
        def xl(op):
            k.ds("ds_swizzle_b32 v33, v32 offset:0x401F"); k.wlg()
            k.e("%s v32, v32, v33" % op); k.e("v_mov_b32 v33, v32"); k.e("s_nop 1")
            k.e("v_permlane32_swap_b32 v32, v33"); k.e("s_nop 1"); k.e("%s v32, v32, v33" % op)
        xl("v_max_f32")
        for i in range(8): k.e("v_sub_f32 v%d, v%d, v32" % (24+i, 24+i))
        for i in range(8): k.e("v_exp_f32 v%d, v%d" % (24+i, 24+i))
        k.e("s_nop 0")
        k.e("v_add_f32 v32, v24, v25")
        for i in range(2, 8): k.e("v_add_f32 v32, v32, v%d" % (24+i))
        xl("v_add_f32")
        k.e("v_rcp_f32 v32, v32"); k.e("s_nop 0")
        for i in range(8): k.e("v_mul_f32 v%d, v%d, v32" % (24+i, 24+i))
        for i in range(4): k.e("v_cvt_pk_bf16_f32 v%d, v%d, v%d" % (36+i, 24+2*i, 25+2*i))
        k.e("s_nop 1")
        for dt in range(2):
            k.e("v_mfma_f32_16x16x32_bf16 %s, %s, %s, 0" % (vr(24+4*dt, 4), vr(40+4*dt, 4), vr(36, 4)))
        k.e("s_nop 8")
        for i in range(4): k.e("v_cndmask_b32 v%d, 0, v%d, s[42:43]" % (28+i, 28+i))
        for i in range(4): k.e("v_cvt_pk_bf16_f32 v%d, v%d, v%d" % (OF+4*hh+i, 24+2*i, 25+2*i))
    k.e("s_nop 1")
    for half in range(2):
        k.wvm("W%d" % half)
        seq = [(hh, n) for hh in range(NH) for n in range(7)]
        def rd(q):
            hh, n = seq[q]; b = 40 + 4*(q % 4)
            k.ds("ds_read_b64_tr_b16 %s, v15 offset:%d" % (vr(b, 2), hh*28*224 + n*32), q)
            k.ds("ds_read_b64_tr_b16 %s, v15 offset:%d" % (vr(b+2, 2), (hh*28+16)*224 + n*32), q)
        for q in range(3): rd(q)
        for q, (hh, n) in enumerate(seq):
            k.wlg(q); a = 4*(7*half+n)
            k.e("v_mfma_f32_16x16x32_bf16 %s, %s, %s, %s" % (ar(a, 4), vr(40+4*(q % 4), 4), vr(OF+4*hh, 4), ar(a, 4)))
            if q+3 < len(seq): rd(q+3)
        if half == 0:
            k.wlg(); wo_dma(1)
    k.e("s_nop 8"); k.e("s_barrier")
    k.e("v_lshlrev_b32 v10, 2, v1"); k.e("s_mul_i32 s30, s3, 14336"); k.e("v_add_u32 v11, s30, v10")
    for i in range(56):
        k.e("v_accvgpr_read_b32 v12, a%d" % i); k.ds("ds_write_b32 v11, v12 offset:%d" % (i*256))
    k.wlg(); k.e("s_barrier")
    k.e("v_add_u32 v13, s28, v7"); k.e("v_mul_u32_u24 v13, 896, v13"); k.e("v_lshl_add_u32 v13, v8, 3, v13")
    k.e("s_mul_i32 s30, s27, 448"); k.e("v_add_u32 v13, s30, v13")
    k.e("s_lshl_b32 s30, s3, 5"); k.e("v_add_u32 v13, s30, v13")
    k.e("s_lshl_b32 s30, s3, 10"); k.e("v_add_u32 v10, s30, v10"); k.e("v_add_u32 v11, %d, v10" % (4*14336))
    for i in range(2):
        if i == 1:
            k.e("s_cmp_ge_u32 s3, 6"); k.e("s_cbranch_scc1 %s_end" % k.name)
        k.vmem("buffer_load_dwordx2 v[24:25], v13, s[8:11], 0 offen offset:%d" % (i*256), "X")
        for ww in range(8):
            for r in range(4):
                k.ds("ds_read_b32 v%d, v%d offset:%d" % (28+4*ww+r, 10 + ww//4, (ww % 4)*14336 + (i*32+r)*256))
        k.wlg(); k.wvm()
        for r in range(4):
            for st in (1, 2, 4):
                for b in range(0, 8, 2*st):
                    k.e("v_add_f32 v%d, v%d, v%d" % (28+4*b+r, 28+4*b+r, 28+4*(b+st)+r))
        k.e("v_lshlrev_b32 v32, 16, v24"); k.e("v_and_b32 v33, 0xffff0000, v24"); k.e("v_lshlrev_b32 v34, 16, v25"); k.e("v_and_b32 v35, 0xffff0000, v25")
        for r in range(4): k.e("v_add_f32 v%d, v%d, v%d" % (28+r, 28+r, 32+r))
        k.e("v_cvt_pk_bf16_f32 v36, v28, v29"); k.e("v_cvt_pk_bf16_f32 v37, v30, v31")
        k.vmem("buffer_store_dwordx2 v[36:37], v13, s[32:35], 0 offen offset:%d" % (i*256)); k.e("s_nop 1")
    k.label(k.name + "_end")
    return k, k.text(168, 112, 64), (256, 512, max(8*WB, 8*14336))

def k3():
    k = K("k3_kernel"); k.stv = 158
    prologue(k, 224, [(4, 4), (5, 6), (9, 20)])
    k.srd(8, 20, S*D*2, WS_H); k.srd(12, 4, D*F*2); k.srd(44, 6, D*F*2); k.srd(16, 20, S*F*2, WS_ACT)
    k.e("s_and_b32 s24, s2, 7"); k.e("s_lshr_b32 s25, s2, 3")
    k.e("s_cmp_ge_u32 s25, 14"); k.e("s_cselect_b32 s26, 1, 0")
    k.e("s_mul_i32 s27, s26, 14"); k.e("s_sub_u32 s27, s25, s27")
    k.e("s_lshl_b32 s24, s24, 1"); k.e("s_add_u32 s24, s24, s26"); k.e("s_lshl_b32 s36, s24, 7")
    k.e("s_and_b32 s34, s3, 3"); k.e("s_lshr_b32 s35, s3, 2")
    k.e("s_lshl_b32 s37, s34, 5"); k.e("s_add_u32 s28, s36, s37")
    k.e("v_lshrrev_b32 v2, 4, v1"); k.e("v_mul_u32_u24 v2, 3584, v2"); k.e("v_and_b32 v3, 15, v1")
    k.e("v_lshrrev_b32 v4, 4, v1"); k.e("s_and_b32 s38, s3, 1"); k.e("s_lshl_b32 s38, s38, 2"); k.e("v_or_b32 v4, s38, v4"); k.e("v_lshlrev_b32 v4, 1, v4")
    k.e("v_xor_b32 v3, v4, v3"); k.e("v_lshl_add_u32 v2, v3, 4, v2")
    k.e("s_lshl_b32 s38, s27, 8"); k.e("s_mul_i32 s39, s34, %d" % (8*3584)); k.e("s_add_u32 s38, s38, s39")
    k.e("s_lshl_b32 s39, s3, 11")
    k.e("s_cmp_eq_u32 s35, 0")
    for i in range(2): k.e("s_cselect_b32 s%d, s%d, s%d" % (60+i, 12+i, 44+i))
    k.e("s_mov_b32 s62, 0x%x" % (D*F*2)); k.e("s_mov_b32 s63, 0x00020000")
    SB = 16384
    ABYTES = 128*APITCH
    def slot_addr(sl):
        sl = sl % 10
        return 131072 + sl*SB if sl < 2 else (sl-2)*SB
    def dma_slot(sl, addr):
        for i in range(2):
            k.e("s_add_u32 s30, s39, %d" % (addr + i*1024)); k.e("s_mov_b32 m0, s30")
            k.e("s_add_u32 s31, s38, %d" % ((sl*32 + 4*i)*3584))
            k.vmem("buffer_load_dwordx4 v2, s[60:63], s31 offen lds", ("B", sl))
    tr_base16(k, 5, 256, 6)
    k.e("s_lshl_b32 s29, s35, 7")
    k.e("v_bfe_u32 v8, v1, 4, 1"); k.e("v_bfe_u32 v9, v1, 2, 2"); k.e("v_lshl_add_u32 v8, v8, 2, v9"); k.e("v_lshlrev_b32 v8, 5, v8")
    k.e("v_and_b32 v9, 31, v5"); k.e("v_sub_u32 v10, v5, v9")
    PB = [144, 145, 146, 147]
    for p in range(4):
        k.e("v_add_u32 v11, %d, v9" % (p*32)); k.e("v_add_u32 v11, s29, v11"); k.e("v_xor_b32 v11, v8, v11"); k.e("v_add_u32 v%d, v10, v11" % PB[p])
        k.e("v_add_u32 v%d, 65536, v%d" % (PB[p]+4, PB[p])); k.e("v_add_u32 v%d, 131072, v%d" % (PB[p]+8, PB[p]))
    def rd_addr(q, addr):
        p, m = q // 2, q % 2
        o = addr + m*8192
        return PB[p] + 4*(o // 65536), (o % 65536, o % 65536 + 4*256)
    gemm_ln(k, 128, 8, SB, 2, slot_addr, dma_slot, 8, rd_addr, lambda i, q: 4*(8*i+q), {0: (1, []), 2: (5, []), 6: (9, [10, 11, 12, 13]), 10: (13, [])})
    k.e("v_and_b32 v3, 15, v1"); k.e("v_add_u32 v3, s28, v3"); k.e("v_mul_u32_u24 v3, 3584, v3")
    k.e("v_lshrrev_b32 v4, 4, v1"); k.e("v_lshl_add_u32 v3, v4, 3, v3"); k.e("v_add_u32 v4, %d, v3" % (16*3584))
    k.e("s_lshl_b32 s30, s27, 8"); k.e("s_add_u32 s30, s30, s29"); k.e("s_mov_b32 s31, 0x%x" % f2u(-1.4426950408889634))
    for p in range(4):
        for i in range(2):
            ga = 4*(8*i+2*p); ua = ga + 4
            for r in range(4):
                k.e("v_accvgpr_read_b32 v%d, a%d" % (8+r, ga+r)); k.e("v_accvgpr_read_b32 v%d, a%d" % (12+r, ua+r))
            for r in range(4): k.e("v_mul_f32 v%d, s31, v%d" % (20+r, 8+r))
            for r in range(4): k.e("v_exp_f32 v%d, v%d" % (20+r, 20+r))
            k.e("s_nop 0")
            for r in range(4): k.e("v_add_f32 v%d, 1.0, v%d" % (20+r, 20+r))
            for r in range(4): k.e("v_rcp_f32 v%d, v%d" % (20+r, 20+r))
            k.e("s_nop 0")
            for r in range(4): k.e("v_mul_f32 v%d, v%d, v%d" % (8+r, 8+r, 20+r))
            for r in range(4): k.e("v_mul_f32 v%d, v%d, v%d" % (8+r, 8+r, 12+r))
            k.e("v_cvt_pk_bf16_f32 v24, v8, v9"); k.e("v_cvt_pk_bf16_f32 v25, v10, v11")
            k.vmem("buffer_store_dwordx2 v[24:25], v%d, s[16:19], s30 offen offset:%d" % (3+i, p*32)); k.e("s_nop 1")
    k.wvm(); k.stamp(4)
    k.label(k.name + "_end")
    return k, k.text(224, 160, 64), (224, 512, 163840)

def k4():
    k = K("k4_kernel"); k.stv = 62
    prologue(k, 224, [(6, 4), (7, 6), (9, 20)])
    k.srd(8, 20, S*F*2, WS_ACT); k.srd(12, 4, F*D*2); k.srd(16, 6, S*D*2); k.srd(48, 20, S*D*2, WS_H)
    k.e("s_and_b32 s24, s2, 7"); k.e("s_lshr_b32 s25, s2, 3")
    k.e("s_mul_i32 s26, s25, 37"); k.e("s_lshr_b32 s26, s26, 8")
    k.e("s_mul_i32 s27, s26, 7"); k.e("s_sub_u32 s27, s25, s27")
    k.e("s_lshl_b32 s24, s24, 2"); k.e("s_add_u32 s24, s24, s26"); k.e("s_lshl_b32 s28, s24, 6")
    k.e("s_lshr_b32 s34, s3, 2"); k.e("s_bfe_u32 s35, s3, 0x10001"); k.e("s_and_b32 s36, s3, 1")
    NBUF = 4; CB = 32768
    k.e("s_and_b32 s37, s3, 3")
    k.e("v_lshrrev_b32 v2, 3, v1"); k.e("v_and_b32 v3, 7, v1")
    k.e("v_xor_b32 v4, v3, v2")
    k.e("v_bfe_u32 v5, v1, 4, 1"); k.e("v_lshlrev_b32 v5, 2, v5"); k.e("v_xor_b32 v5, v3, v5")
    k.e("v_mul_u32_u24 v6, 3584, v2"); k.e("v_lshl_add_u32 v6, v4, 4, v6")
    k.e("v_mul_u32_u24 v7, 896, v2"); k.e("v_lshl_add_u32 v7, v5, 4, v7")
    k.e("s_lshl_b32 s38, s37, 5"); k.e("s_add_u32 s38, s38, s28"); k.e("s_mul_i32 s38, s38, 3584"); k.e("s_mul_i32 s39, s34, 1792"); k.e("s_add_u32 s38, s38, s39")
    k.e("s_sub_u32 s39, s37, 2"); k.e("s_lshl_b32 s39, s39, 5"); k.e("s_mul_i32 s40, s34, 896"); k.e("s_add_u32 s39, s39, s40"); k.e("s_mul_i32 s39, s39, 896")
    k.e("s_lshl_b32 s40, s27, 7"); k.e("s_add_u32 s39, s39, s40")
    k.e("s_lshl_b32 s41, s34, 14"); k.e("s_lshl_b32 s40, s37, 12"); k.e("s_add_u32 s41, s41, s40")
    k.e("s_mov_b32 s45, %d" % (8*896)); k.e("s_mov_b32 s46, %d" % (64*896))
    k.e("s_cmp_lt_u32 s37, 2")
    k.e("s_cselect_b32 s60, s8, s12"); k.e("s_cselect_b32 s61, s9, s13"); k.e("s_cselect_b32 s62, s10, s14"); k.e("s_mov_b32 s63, 0x00020000")
    k.e("s_cselect_b32 s42, s38, s39"); k.e("s_cselect_b32 s43, %d, s45" % (8*3584)); k.e("s_cselect_b32 s44, 128, s46")
    k.e("s_cselect_b64 vcc, -1, 0"); k.e("s_nop 1"); k.e("v_cndmask_b32 v2, v7, v6, vcc")
    def issue(c):
        k.e("s_mov_b32 s31, s42")
        for i in range(4):
            k.e("s_add_u32 s30, s41, %d" % ((c % NBUF)*CB + i*1024)); k.e("s_mov_b32 m0, s30"); k.e("s_nop 0")
            k.vmem("buffer_load_dwordx4 v2, s[60:63], s31 offen lds", c)
            k.e("s_add_u32 s31, s31, s43")
        k.e("s_add_u32 s42, s42, s44")
    for c in range(NBUF-1): issue(c)
    k.e("v_and_b32 v8, 31, v1"); k.e("v_lshrrev_b32 v9, 5, v1"); k.e("v_and_b32 v10, 7, v1")
    k.e("s_lshl_b32 s30, s35, 12"); k.e("s_lshl_b32 s31, s34, 14"); k.e("s_add_u32 s30, s30, s31")
    k.e("v_lshlrev_b32 v11, 7, v8"); k.e("v_add_u32 v11, s30, v11")
    for st in range(4):
        k.e("v_add_u32 v12, %d, v9" % (2*st)); k.e("v_xor_b32 v12, v12, v10"); k.e("v_lshl_add_u32 v%d, v12, 4, v11" % (20+st))
        k.e("v_add_u32 v%d, 65536, v%d" % (24+st, 20+st))
    k.e("v_lshrrev_b32 v12, 5, v1"); k.e("v_bfe_u32 v13, v1, 2, 2"); k.e("v_lshl_add_u32 v12, v12, 3, v13"); k.e("v_lshlrev_b32 v12, 7, v12")
    k.e("v_bfe_u32 v14, v1, 4, 1"); k.e("v_lshlrev_b32 v14, 5, v14"); k.e("v_and_b32 v15, 3, v1"); k.e("v_lshl_add_u32 v14, v15, 3, v14")
    k.e("s_lshl_b32 s30, s36, 6"); k.e("v_add_u32 v14, s30, v14"); k.e("v_bfe_u32 v15, v1, 3, 1"); k.e("v_lshlrev_b32 v15, 6, v15"); k.e("v_xor_b32 v14, v14, v15")
    k.e("s_add_u32 s31, s31, 8192"); k.e("v_add3_u32 v28, v12, v14, s31"); k.e("v_add_u32 v29, 65536, v28")
    for i in range(16): k.e("v_accvgpr_write_b32 a%d, 0" % i)
    AF = 32; BF = 48
    for c in range(14):
        k.wvm(c); k.e("s_barrier")
        if c + NBUF - 1 < 14: issue(c+NBUF-1)
        bo = (c % NBUF)*CB; hi = bo // 65536; bo %= 65536
        for st in range(4):
            k.ds("ds_read_b128 %s, v%d offset:%d" % (vr(AF+4*st, 4), 20+4*hi+st, bo), ("a", st))
            k.ds("ds_read_b64_tr_b16 %s, v%d offset:%d" % (vr(BF+4*st, 2), 28+hi, bo + st*2048), ("a", st))
            k.ds("ds_read_b64_tr_b16 %s, v%d offset:%d" % (vr(BF+4*st+2, 2), 28+hi, bo + st*2048 + 512), ("a", st))
        for st in range(4):
            k.wlg(("a", st))
            k.e("v_mfma_f32_32x32x16_bf16 a[0:15], %s, %s, a[0:15]" % (vr(BF+4*st, 4), vr(AF+4*st, 4)))
    k.e("s_nop 15"); k.e("s_nop 3"); k.e("s_barrier")
    k.e("v_lshlrev_b32 v10, 2, v1"); k.e("s_lshl_b32 s30, s37, 12"); k.e("v_add_u32 v10, s30, v10")
    k.e("s_cmp_eq_u32 s34, 0"); k.e("s_cbranch_scc1 %s_rd" % k.name)
    for i in range(16):
        k.e("v_accvgpr_read_b32 v12, a%d" % i); k.e("ds_write_b32 v10, v12 offset:%d" % (i*256))
    k.e("s_waitcnt lgkmcnt(0)"); k.e("s_barrier"); k.e("s_branch %s_end" % k.name)
    k.label("%s_rd" % k.name)
    k.e("s_lshl_b32 s30, s35, 5"); k.e("s_add_u32 s30, s30, s28")
    k.e("v_and_b32 v13, 31, v1"); k.e("v_add_u32 v13, s30, v13"); k.e("v_mul_u32_u24 v13, 896, v13")
    k.e("v_lshrrev_b32 v14, 5, v1"); k.e("v_lshl_add_u32 v13, v14, 3, v13")
    k.e("s_lshl_b32 s30, s36, 6"); k.e("s_lshl_b32 s31, s27, 7"); k.e("s_add_u32 s30, s30, s31"); k.e("v_add_u32 v13, s30, v13")
    for q in range(4): k.e("buffer_load_dwordx2 v[%d:%d], v13, s[48:51], 0 offen offset:%d" % (24+2*q, 25+2*q, q*16))
    k.e("s_barrier")
    for i in range(16): k.e("ds_read_b32 v%d, v10 offset:%d" % (32+i, i*256))
    k.e("s_waitcnt lgkmcnt(0) vmcnt(0)")
    for q in range(4):
        for r in range(4):
            k.e("v_accvgpr_read_b32 v%d, a%d" % (48+r, 4*q+r)); k.e("v_add_f32 v%d, v%d, v%d" % (48+r, 48+r, 32+4*q+r))
        k.e("v_lshlrev_b32 v52, 16, v%d" % (24+2*q)); k.e("v_and_b32 v53, 0xffff0000, v%d" % (24+2*q)); k.e("v_lshlrev_b32 v54, 16, v%d" % (25+2*q)); k.e("v_and_b32 v55, 0xffff0000, v%d" % (25+2*q))
        for r in range(4): k.e("v_add_f32 v%d, v%d, v%d" % (48+r, 48+r, 52+r))
        k.e("v_cvt_pk_bf16_f32 v56, v48, v49"); k.e("v_cvt_pk_bf16_f32 v57, v50, v51")
        k.e("buffer_store_dwordx2 v[56:57], v13, s[16:19], 0 offen offset:%d" % (q*16)); k.e("s_nop 1")
    k.label(k.name + "_end")
    return k, k.text(80, 64, 64), (224, 512, NBUF*CB)

KERNELS = [k1, k2, k3, k4]
def main():
    ks = [f() for f in KERNELS]
    hdr = open("cdna_kernels/%s.s.ref" % NAME).read().split("\n")
    out = [l for l in hdr if l.startswith(";") and "@launch" not in l and "Override" not in l and "grid=ceil" not in l]
    for k, _, (g, b, lds) in ks:
        out.append("; @launch kernel=%s grid=(%d,1,1) block=(%d,1,1) lds=%d" % (k.name, g, b, lds))
    out += ['.amdgcn_target "amdgcn-amd-amdhsa--gfx950"', ".text"]
    for k, (t, kd), _ in ks: out.append(t)
    out += ['.section .rodata,"a"']
    for k, (t, kd), _ in ks: out += [".p2align 6", kd]
    open("cdna_kernels/%s.s" % NAME, "w").write("\n".join(out) + "\n")
main()
```
